```python
import torch

def _softmax(x, axis=-1):
    return torch.softmax(x, dim=axis)
def _gelu(x):
    return torch.nn.functional.gelu(x, approximate="tanh")
def _silu(x):
    return torch.nn.functional.silu(x)
def _sigmoid(x):
    return torch.sigmoid(x)
def _layernorm(x, axis=-1, eps=1e-5):
    m = x.mean(dim=axis, keepdim=True)
    v = x.var(dim=axis, keepdim=True, unbiased=False)
    return (x - m) / torch.sqrt(v + eps)
def _scatter_add(tgt, idx, src, axis=0):
    return tgt.clone().index_add_(axis, idx, src)
def _segment_sum(src, seg, n):
    out = torch.zeros((n,) + src.shape[1:], dtype=src.dtype)
    return out.index_add_(0, seg, src)
def _pad(x, pw):
    flat = tuple(v for pair in reversed(pw) for v in pair)
    return torch.nn.functional.pad(x, flat)

kernel_name = 'gated_mix__spectral_gfnet__dense_activation_gelu__prompt'

def setup_inputs():

    _w = (lambda a: (lambda t: t.to(torch.bfloat16) if t.is_floating_point() else t)(torch.as_tensor(a)))
    def _A_setup():
        B, S, D = 1, 2048, 448
        Df = D // 2 + 1
        return {
            "x": _w((lambda *s: torch.randn(*s, dtype=torch.bfloat16) * 0.05)(B, S, D)),
            "w_r": _w((lambda *s: torch.randn(*s, dtype=torch.bfloat16) * 0.8)(S, Df) * 0.02),
            "w_i": _w((lambda *s: torch.randn(*s, dtype=torch.bfloat16) * 0.8)(S, Df) * 0.02),
        }
    _A_in = _A_setup()

    def _B_setup():
        B, S, D, F = 1, 2048, 448, 1792
        return {
            "x": _w((lambda *s: torch.randn(*s, dtype=torch.bfloat16) * 0.05)(B, S, D)),
            "w1": _w((lambda *s: torch.randn(*s, dtype=torch.bfloat16) * 3.2)(D, F) * (D ** -0.5)),
            "b1": _w((lambda *s: torch.randn(*s, dtype=torch.bfloat16) * 3.2)(F) * 0.01),
            "w2": _w((lambda *s: torch.randn(*s, dtype=torch.bfloat16) * 0.05)(F, D) * (F ** -0.5)),
            "b2": _w((lambda *s: torch.randn(*s, dtype=torch.bfloat16) * 0.1)(D) * 0.01),
        }
    _B_in = _B_setup()

    return {
        "A_x": _A_in["x"],
        "A_w_r": _A_in["w_r"],
        "A_w_i": _A_in["w_i"],
        "B_x": _B_in["x"],
        "B_w1": _B_in["w1"],
        "B_b1": _B_in["b1"],
        "B_w2": _B_in["w2"],
        "B_b2": _B_in["b2"],
        "gate_w": _w((lambda *s: torch.randn(*s, dtype=torch.bfloat16) * 0.05)(448) * 16.0),
    }

def reference(A_x, A_w_r, A_w_i, B_x, B_w1, B_b1, B_w2, B_b2, gate_w):
    def _A_ref(x, w_r, w_i):
        B, S, D = x.shape
        X = (lambda x, axes=(-2,-1): torch.fft.rfft2(x.float(), dim=axes))(x, axes=(-2, -1))
        W = w_r + 1j * w_i
        X = X * W
        y = (lambda x, s, axes=(-2,-1): torch.fft.irfft2(x, s=s, dim=axes).to(torch.bfloat16))(X, (S, D), axes=(-2, -1))
        return y

    def _B_ref(x, w1, b1, w2, b2):
        h = torch.einsum("bsd,df->bsf", x, w1) + b1
        h = _gelu(h)
        return torch.einsum("bsf,fd->bsd", h, w2) + b2

    x = A_x
    g = _sigmoid((x * gate_w).sum(-1, keepdims=True))
    a = _A_ref(x, A_w_r, A_w_i)
    b = _B_ref(x, B_w1, B_b1, B_w2, B_b2)
    return g * a + (1 - g) * b
```

```python
import re
TRANS=('v_exp_f32','v_log_f32','v_rcp_f32','v_rsq_f32','v_sqrt_f32','v_sin_f32','v_cos_f32')
def regs_of(tok):
    tok=tok.strip()
    tok=re.sub(r'^-','',tok); tok=re.sub(r'^abs\((.*)\)$',r'\1',tok); tok=re.sub(r'^\|(.*)\|$',r'\1',tok)
    m=re.fullmatch(r'([vas])(\d+)',tok)
    if m: return {(m.group(1),int(m.group(2)))}
    m=re.fullmatch(r'([vas])\[(\d+):(\d+)\]',tok)
    if m: return {(m.group(1),i) for i in range(int(m.group(2)),int(m.group(3))+1)}
    if tok=='vcc': return {('s',106),('s',107)}
    if tok=='m0': return {('s',124)}
    if tok=='exec': return {('s',126),('s',127)}
    return set()
class Ins:
    __slots__=('text','op','wr','rd','kind','passes','srcc','data','ws','dpp')
class Asm:
    def __init__(self):
        self.lines=[]; self.hist=[]; self.vm=[]; self.lg=[]; self.smem=False; self.nins=0
    def raw(self,s): self.lines.append(s)
    def comment(self,s): self.lines.append('    ; '+s)
    def label(self,l):
        self.lines.append(l+':')
    def flush_hist(self,n=16):
        self.hist=[]
    def classify(self,text):
        t=text.split(';')[0].strip()
        parts=t.split(None,1); op=parts[0]; rest=parts[1] if len(parts)>1 else ''
        ops=[];depth=0;cur=''
        for ch in rest:
            if ch in '[(': depth+=1
            if ch in '])': depth-=1
            if ch==',' and depth==0: ops.append(cur.strip()); cur=''
            else: cur+=ch
        if cur.strip(): ops.append(cur.strip())
        mods=''
        if ops:
            last=ops[-1].split(None,1)
            ops[-1]=last[0]; mods=last[1] if len(last)>1 else ''
        I=Ins(); I.text=text; I.op=op; I.wr=set(); I.rd=set(); I.passes=0; I.srcc=set(); I.data=set(); I.ws=1; I.dpp=('row_' in mods or 'quad_perm' in mods or 'dpp' in op)
        R=[regs_of(o) for o in ops]
        if op.startswith('v_mfma'):
            I.kind='mfma'; I.wr=R[0]; I.rd=R[1]|R[2]|R[3]; I.srcc=R[3]
            I.passes=8 if '32x32' in op else 4
        elif op.startswith('v_cmp'):
            I.kind='valu'; I.wr=R[0]; I.rd=set().union(*R[1:])
        elif op.startswith('v_readfirstlane') or op.startswith('v_readlane'):
            I.kind='valu'; I.wr=R[0]; I.rd=set().union(*R[1:])
        elif op.startswith('v_permlane') and 'swap' in op:
            I.kind='valu'; I.wr=R[0]|R[1]; I.rd=R[0]|R[1]
        elif op.startswith('v_'):
            I.kind='valu'; I.wr=R[0]; I.rd=set().union(*R[1:]) if len(R)>1 else set()
            if op.startswith(('v_fmac','v_dot2c','v_pk_fmac')) or I.dpp: I.rd|=R[0]
            if '_co_' in op: I.wr|=R[1]
            if op.startswith('v_cndmask') and len(ops)==3: I.rd|=regs_of('vcc')
        elif op.startswith(('buffer_load','global_load')):
            I.kind='vmem'
            if ' lds' in ' '+mods or '_lds_' in op: I.rd=set().union(*R)|{('s',124)}
            else: I.wr=R[0]; I.rd=set().union(*R[1:])
            if 'd16' in op: I.rd|=R[0]
        elif op.startswith(('buffer_store','buffer_atomic')):
            I.kind='vmem'; I.rd=set().union(*R); I.data=R[0] if ('x3' in op or 'x4' in op) else set()
            if 'atomic' in op and 'sc0' in mods: I.wr=R[0]
        elif op.startswith('global_store'):
            I.kind='vmem'; I.rd=set().union(*R); I.data=R[1] if ('x3' in op or 'x4' in op) else set()
        elif op.startswith('ds_read') or op.startswith('ds_bpermute') or op.startswith('ds_swizzle'):
            I.kind='ds'; I.wr=R[0]; I.rd=set().union(*R[1:])
            if 'd16' in op: I.rd|=R[0]
        elif op.startswith('ds_'):
            I.kind='ds'; I.rd=set().union(*R)
        elif op.startswith(('s_load','s_memtime','s_memrealtime','s_buffer_load')):
            I.kind='smem'; I.wr=R[0]; I.rd=set().union(*R[1:]) if len(R)>1 else set()
        elif op=='s_nop':
            I.kind='nop'; I.ws=int(ops[0],0)+1
        elif op.startswith(('s_cmp','s_cbranch','s_branch','s_waitcnt','s_barrier','s_endpgm','s_setprio','s_sleep','buffer_inv','buffer_wbl2')):
            I.kind='salu'; I.rd=set().union(*R) if R else set()
        elif op.startswith('s_'):
            I.kind='salu'; I.wr=R[0]; I.rd=set().union(*R[1:]) if len(R)>1 else set()
            if 'saveexec' in op: I.wr|=regs_of('exec')
        else: raise Exception('unknown op '+text)
        return I
    def need(self,P,I):
        n=0
        vw={r for r in P.wr if r[0] in 'va'}; sw={r for r in P.wr if r[0]=='s'}
        if P.kind=='valu':
            if I.kind=='mfma' and vw&I.rd: n=max(n,2)
            if P.op in TRANS and I.kind!='nop' and I.op not in TRANS and vw&I.rd: n=max(n,1)
            if I.op.startswith(('v_readfirstlane','v_readlane')) and vw&I.rd: n=max(n,1)
            if (I.dpp or I.op.startswith('v_permlane')) and vw&I.rd: n=max(n,2)
            if sw:
                if I.kind in('valu','mfma') and sw&I.rd: n=max(n,4 if I.op.startswith(('v_readlane','v_writelane')) else 2)
                if I.kind=='vmem' and sw&I.rd: n=max(n,5)
                if I.kind in('salu','smem') and sw&I.rd: n=max(n,1)
        if P.kind=='mfma':
            big=12 if P.passes==8 else 8
            if I.kind=='mfma':
                ab=I.rd-I.srcc
                if P.wr&ab: n=max(n,big)
                if P.wr&I.srcc and not (P.wr==I.srcc and P.passes==I.passes): n=max(n,big-2)
                if P.wr&I.wr and not (P.wr==I.wr): n=max(n,big)
            elif I.kind in('valu','vmem','ds'):
                if P.wr&(I.rd|I.wr): n=max(n,big)
                if I.kind=='valu' and P.srcc&I.wr: n=max(n,7 if P.passes==8 else 3)
        if P.kind=='salu' and ('s',124) in P.wr and I.kind=='vmem' and ('s',124) in I.rd: n=max(n,1)
        if P.kind=='vmem' and P.data and (P.data&I.wr): n=max(n,2)
        return n
    def __call__(self,text,tag=None):
        for t in text.split('\n'):
            t=t.strip()
            if not t: continue
            I=self.classify(t)
            dist=0; pad=0
            for P in reversed(self.hist):
                pad=max(pad,self.need(P,I)-dist)
                dist+=P.ws
                if dist>=24: break
            while pad>0:
                k=min(pad,16); N=self.classify(f's_nop {k-1}'); self.hist.append(N); self.lines.append(f'    s_nop {k-1}'); pad-=k
            self.hist.append(I); self.hist=self.hist[-40:]
            self.lines.append('    '+t); self.nins+=1
            if I.kind=='vmem': self.vm.append(tag)
            if I.kind=='ds': self.lg.append(tag)
            if I.kind=='smem': self.smem=True
    def wait_vm(self,tag=None,extra=''):
        if tag is None: n=0
        else:
            tags=tag if isinstance(tag,(list,tuple,set)) else [tag]
            idx=[i for i,t in enumerate(self.vm) if t in tags]
            if not idx: return
            n=len(self.vm)-1-max(idx)
        assert n<=63, n
        self.vm=self.vm[len(self.vm)-n:] if n else []
        self(f's_waitcnt vmcnt({n})')
    def wait_lg(self,tag=None):
        if tag is None or self.smem: n=0; self.smem=False
        else:
            tags=tag if isinstance(tag,(list,tuple,set)) else [tag]
            idx=[i for i,t in enumerate(self.lg) if t in tags]
            if not idx: return
            n=len(self.lg)-1-max(idx)
            n=min(n,15)
        self.lg=self.lg[len(self.lg)-n:] if n else []
        self(f's_waitcnt lgkmcnt({n})')
    def text(self): return '\n'.join(self.lines)+'\n'
def interleave(A, main, fill, start=0):
    n=len(main); m=len(fill); k=0
    for i,x in enumerate(main):
        (A(x) if isinstance(x,str) else x())
        if i>=start:
            tgt=(i-start+1)*m//(n-start)
            while k<tgt:
                y=fill[k]; (A(y) if isinstance(y,str) else y()); k+=1
    while k<m:
        y=fill[k]; (A(y) if isinstance(y,str) else y()); k+=1
def vr(b,n=1,f='v'): return f'{f}{b}' if n==1 else f'{f}[{b}:{b+n-1}]'
def kd(name,vgpr,accum,sgpr=102):
    return f'''.amdhsa_kernel {name}
  .amdhsa_next_free_vgpr {vgpr}
  .amdhsa_next_free_sgpr {sgpr}
  .amdhsa_accum_offset {accum}
  .amdhsa_group_segment_fixed_size 0
  .amdhsa_kernarg_size 96
  .amdhsa_user_sgpr_count 2
  .amdhsa_user_sgpr_kernarg_segment_ptr 1
  .amdhsa_system_sgpr_workgroup_id_x 1
  .amdhsa_float_denorm_mode_32 3
.end_amdhsa_kernel
'''
```

```python
import sys, math, struct
from asmlib import *
NAME='gated_mix__spectral_gfnet__dense_activation_gelu__prompt'
WS_Y=0; WS_Z=0x200000; WS_W=0x400000; WS_G=0x600000; WS_H=0x800000
SZ_Y=224*8192; SZ_Z=225*8192; SZ_W=225*8192; SZ_G=8192; SZ_H=64*112*1024
def f32(x): return '0x%08x'%struct.unpack('<I',struct.pack('<f',x))[0]
def srd(A,d,base,size,off=0):
    if off:
        A(f's_add_u32 s{d}, s{base}, {off}'); A(f's_addc_u32 s{d+1}, s{base+1}, 0')
    else:
        A(f's_mov_b32 s{d}, s{base}'); A(f's_mov_b32 s{d+1}, s{base+1}')
    A(f's_mov_b32 s{d+2}, {size}'); A(f's_mov_b32 s{d+3}, 0x20000')
def entry(A,name):
    A.raw(f'.globl {name}\n.p2align 8\n.type {name},@function\n{name}:'); A.hist=[]; A.vm=[]; A.lg=[]
MF32='v_mfma_f32_32x32x16_bf16'; MF16='v_mfma_f32_16x16x32_bf16'
LOG2E=1.4426950408889634
GC0=-2*0.7978845608028654*LOG2E; GC1=GC0*0.044715

def gelu_ops(acc, tmp, c0,c1,one, outreg):
    h=vr(acc,2); t=vr(tmp,2); e=vr(tmp+2,2)
    return [f'v_pk_mul_f32 {t}, {h}, {h}',
            f'v_pk_fma_f32 {t}, {t}, {vr(c1,2)}, {vr(c0,2)}',
            f'v_pk_mul_f32 {t}, {h}, {t}',
            f'v_exp_f32 v{tmp+2}, v{tmp}', f'v_exp_f32 v{tmp+3}, v{tmp+1}',
            f'v_pk_add_f32 {e}, {e}, {vr(one,2)}',
            f'v_rcp_f32 v{tmp+2}, v{tmp+2}', f'v_rcp_f32 v{tmp+3}, v{tmp+3}',
            f'v_pk_mul_f32 {t}, {h}, {e}',
            f'v_cvt_pk_bf16_f32 v{outreg}, v{tmp}, v{tmp+1}']
def zipn(lists):
    out=[]
    for i in range(max(len(l) for l in lists)):
        for l in lists:
            if i<len(l): out.append(l[i])
    return out

def k1(A):
    entry(A,'k1_kernel')
    A('s_cmp_ge_u32 s2, 256'); A('s_cbranch_scc1 K1_END')
    A('s_load_dwordx2 s[4:5], s[0:1], 0'); A('s_load_dwordx4 s[8:11], s[0:1], 32'); A('s_load_dwordx2 s[12:13], s[0:1], 88')
    A('v_lshrrev_b32 v2, 6, v0'); A('v_and_b32 v1, 63, v0'); A('v_readfirstlane_b32 s40, v2')
    A('s_and_b32 s41, s2, 7'); A('s_lshr_b32 s42, s2, 3')
    A('s_cmp_ge_u32 s42, 28'); A('s_cbranch_scc1 K1_HELP')
    A('s_lshl_b32 s43, s41, 1'); A('s_cmp_ge_u32 s42, 14'); A('s_cselect_b32 s44, 1, 0'); A('s_add_u32 s43, s43, s44')
    A('s_mul_i32 s44, s44, 14'); A('s_sub_u32 s44, s42, s44')
    A('v_lshrrev_b32 v3, 3, v1')
    A('v_and_b32 v4, 7, v1'); A('v_bfe_u32 v5, v1, 4, 1'); A('v_lshlrev_b32 v5, 2, v5'); A('v_xor_b32 v4, v4, v5'); A('v_lshlrev_b32 v4, 4, v4')
    A('v_mul_u32_u24 v6, 896, v3'); A('v_add_u32 v6, v6, v4')
    for i in (1,2,3):
        A(f'v_xor_b32 v{6+i}, {i<<4}, v6'); A(f'v_add_u32 v{6+i}, {i*(28672-1024)}, v{6+i}')
    A('v_mul_u32_u24 v10, 3584, v3'); A('v_add_u32 v10, v10, v4'); A(f'v_add_u32 v11, {8*3584-1024}, v10')
    A('s_lshl_b32 s45, s43, 7'); A('s_lshl_b32 s46, s40, 3'); A('s_add_u32 s45, s45, s46'); A('s_mul_i32 s45, s45, 896')
    A('s_mul_i32 s46, s40, %d'%(16*3584)); A('s_lshl_b32 s47, s44, 8'); A('s_add_u32 s46, s46, s47')
    A('s_lshl_b32 s48, s40, 12')
    A('s_lshl_b32 s49, s40, 11')
    A.wait_lg()
    srd(A,16,4,1835008); srd(A,20,8,1605632)
    def dma_x(c):
        A(f's_add_u32 m0, s48, {c*16384}'); A(f's_add_u32 s50, s45, {128*c}')
        for i in range(4): A(f'buffer_load_dwordx4 v{6+i}, s[16:19], s50 offen offset:{1024*i} lds', tag=f'x{c}')
    def dma_w(pair,c):
        base=(114688+(c%6)*8192) if pair==0 else c*8192
        A(f's_add_u32 m0, s49, {base}'); A(f's_add_u32 s51, s46, {64*c*3584+128*pair}')
        for i in range(2): A(f'buffer_load_dwordx4 v{10+i}, s[20:23], s51 offen offset:{1024*i} lds', tag=f'w{pair}_{c}')
    for c in range(7):
        dma_x(c)
        if c<6: dma_w(0,c)
    srd(A,24,10,3584); srd(A,28,12,SZ_H,WS_H); srd(A,32,12,SZ_Y,WS_Y)
    A('v_and_b32 v12, 31, v1'); A('v_lshlrev_b32 v13, 1, v12')
    for cb in range(4): A(f'buffer_load_ushort v{208+4*cb}, v13, s[24:27], s47 offen offset:{64*cb}', tag='bias')
    for cb in range(4):
        for j in (1,2,3): A(f'v_mov_b32 v{208+4*cb+j}, 0')
    A('v_lshrrev_b32 v14, 5, v1')
    A('v_cmp_eq_u32 vcc, 0, v14'); A('v_mov_b32 v225, 0'); A('v_mov_b32 v226, 0'); A('v_mov_b32 v227, 0'); A('v_mov_b32 v15, 0x3f80')
    A('v_cndmask_b32 v224, 0, v15, vcc')
    A('v_and_b32 v2, 3, v12'); A('v_lshrrev_b32 v3, 2, v12'); A('v_lshl_add_u32 v4, v2, 3, v3')
    A('v_bfe_u32 v5, v12, 3, 1'); A('v_lshl_add_u32 v5, v5, 2, v2')
    A('v_xor_b32 v5, v5, v14'); A('v_lshlrev_b32 v5, 4, v5'); A('v_lshl_add_u32 v228, v4, 7, v5'); A('v_add_u32 v228, s48, v228')
    for t in (1,2,3): A(f'v_xor_b32 v{228+t}, {t<<5}, v228')
    A('v_bfe_u32 v2, v1, 2, 2')
    A('v_lshl_add_u32 v3, v14, 3, v2'); A('v_lshlrev_b32 v3, 7, v3')
    A('v_lshrrev_b32 v4, 1, v2'); A('v_lshlrev_b32 v4, 6, v4')
    A('v_bfe_u32 v5, v1, 4, 1'); A('v_lshlrev_b32 v5, 5, v5')
    A('v_and_b32 v2, 3, v1'); A('v_lshlrev_b32 v2, 3, v2')
    A('v_add3_u32 v234, v3, v4, v5'); A('v_add_u32 v234, v234, v2'); A('v_xor_b32 v235, 64, v234')
    A('v_add_u32 v232, 114688, v234'); A('v_add_u32 v233, 114688, v235')
    A('v_lshrrev_b32 v2, 1, v12'); A('s_lshl_b32 s52, s44, 4'); A('v_add_u32 v2, s52, v2')
    A('v_and_b32 v3, 1, v12')
    A('v_lshl_add_u32 v4, v2, 1, v3'); A('v_cmp_eq_u32 vcc, 1, v4')
    A('v_mov_b32 v5, 224'); A('v_cndmask_b32 v2, v2, v5, vcc'); A('v_cndmask_b32 v3, v3, 0, vcc')
    A('v_cvt_f32_u32 v2, v2'); A('v_cvt_f32_u32 v3, v3'); A(f'v_mul_f32 v2, {f32(1/448)}, v2'); A('v_mul_f32 v3, 0x3e800000, v3')
    A('v_lshlrev_b32 v4, 3, v14'); A('v_cvt_f32_u32 v4, v4'); A('v_fma_f32 v160, v4, v2, v3')
    for j in range(1,8): A(f'v_add_f32 v{160+j}, v{159+j}, v2')
    A('v_mul_f32 v4, 0x41800000, v2')
    for j in range(8): A(f'v_add_f32 v{168+j}, v{160+j}, v4')
    for j in range(16): A(f'v_cos_f32 v{160+j}, v{160+j}')
    A('v_cos_f32 v176, v4'); A('v_add_f32 v176, v176, v176'); A('v_mov_b32 v177, v176')
    for r,val in ((236,GC0),(238,GC1),(240,1.0)):
        A(f'v_mov_b32 v{r}, {f32(val)}'); A(f'v_mov_b32 v{r+1}, {f32(val)}')
    A('v_lshlrev_b32 v242, 4, v1'); A('v_lshlrev_b32 v243, 14, v14'); A('v_lshl_add_u32 v243, v12, 2, v243')
    A('s_lshl_b32 s53, s43, 2'); A('s_add_u32 s53, s53, s40')
    A('s_mul_i32 s54, s53, %d'%(112*1024)); A('s_lshl_b32 s55, s44, 13'); A('s_add_u32 s54, s54, s55')
    A('s_lshl_b32 s55, s44, 17'); A('s_lshl_b32 s56, s53, 7'); A('s_add_u32 s55, s55, s56')
    ACC=[32,48,64,80]; ACY=16
    def fgen(t):
        cur=160+8*(t&1); ops=[]
        if t>=2:
            oth=160+8*((t+1)&1)
            for j in range(0,8,2): ops.append(f'v_pk_fma_f32 {vr(cur+j,2)}, v[176:177], {vr(oth+j,2)}, {vr(cur+j,2)} neg_lo:[0,0,1] neg_hi:[0,0,1]')
        for j in range(4): ops.append(f'v_cvt_pk_bf16_f32 v{180+4*(t&1)+j}, v{cur+2*j}, v{cur+2*j+1}')
        return ops
    def readsA(c):
        ops=[]
        for tt in range(4):
            t=4*c+tt
            off=(c if c<4 else c-4)*16384
            ops.append((f'ds_read_b128 a[{4*t}:{4*t+3}], v{228+tt} offset:{off}',f'r{c}'))
            for cb in range(2):
                for e in range(2):
                    d=96+32*(c&1)+8*tt+4*cb+2*e
                    ops.append((f'ds_read_b64_tr_b16 v[{d}:{d+1}], v{232+cb} offset:{(c%6)*8192+tt*2048+e*512}',f'r{c}'))
        return [ (lambda s=s,tg=tg: A(s,tag=tg)) for s,tg in ops]
    def mfmaA(c):
        ops=[]
        for tt in range(4):
            t=4*c+tt; xb=f'a[{4*t}:{4*t+3}]'
            ops.append(f'{MF32} {vr(ACY,16)}, {vr(180+4*(t&1),4)}, {xb}, '+('0' if t==0 else vr(ACY,16)))
            for cb in range(2):
                ops.append(f'{MF32} {vr(ACC[cb],16)}, {vr(96+32*(c&1)+8*tt+4*cb,4)}, {xb}, '+('0' if t==0 else vr(ACC[cb],16)))
        return ops
    def readB(cb,t):
        slot=(cb*28+t)%8
        d=128+4*slot
        return [(lambda e=e: A(f'ds_read_b64_tr_b16 v[{d+2*e}:{d+2*e+1}], v{234+cb} offset:{t*2048+e*512}',tag=f'b{cb}_{t}')) for e in range(2)]
    A.wait_vm('bias') if False else None
    for c in range(8):
        if c<=6:
            A.wait_vm([f'x{c}',f'w0_{c}']);
        else:
            A.wait_vm(['w1_3'])
        A.wait_lg(); A('s_barrier')
        if c==4:
            for t in range(4): A(f'v_add_u32 v{228+t}, 0x10000, v{228+t}')
        if c==1: dma_w(0,6)
        if 1<=c<=4:
            for cc in (2*(c-1),2*(c-1)+1):
                if cc<7: dma_w(1,cc)
        if c==0:
            for op in readsA(0): op()
            for s in fgen(0): A(s)
            continue
        main=mfmaA(c-1)
        if c==7:
            for cb in range(4): A(f'{MF32} {vr(ACC[cb],16)}, {vr(208+4*cb,4)}, v[224:227], '+('0' if cb>=2 else vr(ACC[cb],16)))
        seq=[]
        rd=readsA(c) if c<=6 else sum([readB(0,t) for t in range(6)],[])
        per=[rd[i*len(rd)//4:(i+1)*len(rd)//4] for i in range(4)]
        for tt in range(4):
            t=4*(c-1)+tt
            fill=list(per[tt])+(fgen(t+1) if t+1<28 else [])
            interleave(A,main[3*tt:3*tt+3],fill)
    def ystore():
        ops=[]
        for g in range(4):
            for e in range(2):
                r=190+(2*g+e)
                ops.append(f'v_cvt_pk_bf16_f32 v{r}, v{ACY+4*g+2*e}, v{ACY+4*g+2*e+1}')
                ops.append(lambda r=r,g=g,e=e: (A(f's_add_u32 s57, s55, {(4*g+e)*8192}'), A(f'buffer_store_dword v{r}, v243, s[32:35], s57 offen',tag='st')))
        return ops
    def gelu_block(cb):
        ops=[]
        for gp in range(2):
            outb=200+4*gp
            for half in range(2):
                l0=gelu_ops(ACC[cb]+8*gp+4*half,   244, 236,238,240, outb+2*half)
                l1=gelu_ops(ACC[cb]+8*gp+4*half+2, 248, 236,238,240, outb+2*half+1)
                ops+=zipn([l0,l1])
            ops.append(lambda gp=gp,outb=outb: A(f'buffer_store_dwordx4 {vr(outb,4)}, v242, s[28:31], s{58+(cb>>1)} offen offset:{(2*(cb&1)+gp)*1024}',tag='st'))
        return ops
    A('s_mov_b32 s58, s54'); A('s_add_u32 s59, s54, 4096')
    for cb in (0,1):
        fillv = (ystore()+gelu_block(0)+gelu_block(1)) if cb==0 else gelu_block(2)
        main=[]
        for t in range(28):
            def mm(cb=cb,t=t):
                if cb==0 and t==10:
                    A.wait_vm(['w1_6']); A('s_barrier')
                g=cb*28+t+6
                if g<56:
                    for op in readB(g//28,g%28): op()
                A.wait_lg(f'b{cb}_{t}')
                d=128+4*((cb*28+t)%8)
                A(f'{MF32} {vr(ACC[2+cb],16)}, {vr(d,4)}, a[{4*t}:{4*t+3}], {vr(ACC[2+cb],16)}')
            main.append(mm)
        interleave(A,main,fillv,start=1)
    for op in gelu_block(3): (A(op) if isinstance(op,str) else op())
    A('s_endpgm')
    A.label('K1_HELP'); A.hist=[]; A.vm=[]; A.lg=[]
    A('s_load_dwordx4 s[60:63], s[0:1], 8'); A('s_load_dwordx2 s[64:65], s[0:1], 64')
    A('s_lshl_b32 s43, s41, 2'); A('s_sub_u32 s44, s42, 28'); A('s_add_u32 s43, s43, s44')
    A.wait_lg()
    srd(A,16,60,921600); srd(A,20,62,921600); srd(A,24,4,1835008); srd(A,28,64,896); srd(A,32,12,SZ_W,WS_W); srd(A,36,12,SZ_G,WS_G)
    A('s_lshr_b32 s45, s43, 3'); A('s_and_b32 s46, s43, 7')
    A('s_lshl_b32 s47, s46, 2'); A('s_add_u32 s47, s47, s40'); A('s_lshl_b32 s47, s47, 2'); A('s_add_u32 s47, s47, s45'); A('s_mul_i32 s47, s47, 7200')
    A('v_lshlrev_b32 v2, 4, v1')
    A('s_lshl_b32 s48, s40, 13')
    for arr in range(2):
        for i in range(8):
            if i%4==0:
                A(f's_add_u32 m0, s48, {arr*32768+i*1024}'); A(f's_add_u32 s49, s47, {i*1024}')
            A(f'buffer_load_dwordx4 v2, s[{16+4*arr}:{19+4*arr}], s49 offen offset:{(i%4)*1024} lds',tag='wl')
    A('v_lshrrev_b32 v3, 3, v1'); A('v_and_b32 v4, 7, v1'); A('v_lshlrev_b32 v4, 4, v4'); A('v_mul_u32_u24 v5, 896, v3'); A('v_add_u32 v5, v5, v4')
    A('s_lshl_b32 s50, s43, 6'); A('s_lshl_b32 s51, s40, 4'); A('s_add_u32 s50, s50, s51'); A('s_mul_i32 s51, s50, 896'); A('s_add_u32 s52, s51, %d'%(8*896))
    for c in range(7): A(f'buffer_load_dwordx4 {vr(16+4*c,4)}, v4, s[28:31], 0 offen offset:{128*c}',tag='gl')
    for i in range(2):
        for c in range(7): A(f'buffer_load_dwordx4 {vr(48+28*i+4*c,4)}, v5, s[24:27], s{51+i} offen offset:{128*c}',tag='gl')
    A('v_mov_b32 v8, 0'); A('v_mov_b32 v9, 0')
    A.wait_vm('gl')
    for c in range(28):
        for i in range(2): A(f'v_dot2c_f32_bf16 v{8+i}, v{48+28*i+c}, v{16+c}')
    A('s_nop 3')
    for sh in ('quad_perm:[1,0,3,2]','quad_perm:[2,3,0,1]','row_half_mirror'):
        for i in range(2): A(f'v_add_f32_dpp v{8+i}, v{8+i}, v{8+i} {sh} row_mask:0xf bank_mask:0xf')
    for i in range(2):
        A(f'v_mul_f32 v{8+i}, {f32(-LOG2E)}, v{8+i}'); A(f'v_exp_f32 v{8+i}, v{8+i}'); A(f'v_add_f32 v{8+i}, 1.0, v{8+i}'); A(f'v_rcp_f32 v{8+i}, v{8+i}')
    A('v_lshlrev_b32 v6, 2, v3'); A('s_lshl_b32 s53, s50, 2')
    for i in range(2): A(f'buffer_store_dword v{8+i}, v6, s[36:39], s53 offen offset:{32*i}',tag='st')
    A.wait_vm('wl'); A('s_barrier')
    A('v_and_b32 v2, 15, v1'); A('v_lshrrev_b32 v3, 4, v0')
    A('v_mul_u32_u24 v4, 450, v2'); A('v_lshl_add_u32 v4, v3, 1, v4')
    A('v_lshlrev_b32 v5, 13, v3'); A('v_lshl_add_u32 v5, v2, 4, v5')
    A('s_lshl_b32 s54, s45, 11'); A('s_lshl_b32 s55, s46, 8'); A('s_add_u32 s54, s54, s55')
    def fin(it):
        b=16+8*it
        A.wait_lg(f't{it}')
        for r in range(4): A(f'v_lshl_or_b32 v{b+r}, v{b+4+r}, 16, v{b+r}')
        A(f's_add_u32 s56, s54, {it*16*8192}'); A(f'buffer_store_dwordx4 {vr(b,4)}, v5, s[32:35], s56 offen')
    for it in range(15):
        b=16+8*it
        for r in range(4):
            A(f'ds_read_u16 v{b+r}, v4 offset:{r*8192+32*it}',tag=f't{it}')
            A(f'ds_read_u16 v{b+4+r}, v4 offset:{32768+r*8192+32*it}',tag=f't{it}')
        if it>0: fin(it-1)
    fin(14)
    A.label('K1_END'); A('s_endpgm')

def cmul_pk(A,ore,oim,are,aim,bre,bim,negim=False):
    A(f'v_pk_mul_f32 {vr(ore,2)}, {vr(are,2)}, {vr(bre,2)}')
    A(f'v_pk_mul_f32 {vr(oim,2)}, {vr(are,2)}, {vr(bim,2)}')
    A(f'v_pk_fma_f32 {vr(ore,2)}, {vr(aim,2)}, {vr(bim,2)}, {vr(ore,2)} neg_lo:[1,0,0] neg_hi:[1,0,0]')
    A(f'v_pk_fma_f32 {vr(oim,2)}, {vr(aim,2)}, {vr(bre,2)}, {vr(oim,2)}')
def k2(A):
    entry(A,'k2_kernel')
    A('s_cmp_ge_u32 s2, 225'); A('s_cbranch_scc1 K2_END')
    A('s_load_dwordx2 s[12:13], s[0:1], 88')
    A('v_lshrrev_b32 v2, 6, v0'); A('v_and_b32 v1, 63, v0'); A('v_readfirstlane_b32 s40, v2')
    A('v_and_b32 v3, 15, v1'); A('v_lshrrev_b32 v4, 4, v1')
    A('v_lshlrev_b32 v5, 9, v4'); A('v_lshl_add_u32 v5, v3, 4, v5')
    A('v_lshlrev_b32 v6, 4, v1')
    A('s_cmp_eq_u32 s2, 224'); A('s_cselect_b32 s41, 0, s2'); A('s_lshl_b32 s41, s41, 13')
    A('s_lshl_b32 s42, s2, 13'); A('s_lshl_b32 s43, s40, 11'); A('s_add_u32 s43, s43, s42')
    A('s_add_u32 s44, s41, 4096')
    A.wait_lg()
    srd(A,16,12,SZ_Y,WS_Y); srd(A,20,12,SZ_W,WS_W); srd(A,24,12,SZ_Z,WS_Z)
    DAT=16
    for u in range(4):
        for t in range(2):
            A(f'buffer_load_dwordx4 {vr(DAT+16*t+4*u,4)}, v5, s[16:19], s{41 if u<2 else 44} offen offset:{(u&1)*2048+t*256}',tag=f'd{u}')
    WT=48
    for t in range(2): A(f'buffer_load_dwordx4 {vr(WT+4*t,4)}, v6, s[20:23], s43 offen offset:{t*1024}',tag='w')
    C64R=64; C64I=80; C32R=96; C32I=112; T1R=128; T1I=136; T2R=144; T2I=152; TMP=160
    A('v_lshl_add_u32 v7, v2, 4, v3'); A('v_cvt_f32_u32 v7, v7')
    A('v_cvt_f32_u32 v8, v3')
    A('v_lshlrev_b32 v9, 2, v4'); A('v_cvt_f32_u32 v9, v9')
    A('v_mul_f32 v10, 0x3c800000, v7')
    A('v_mul_f32 v11, v10, v9')
    A('v_mul_f32 v12, 0x41800000, v10')
    def cs_pack(arg,dre,dim):
        A(f'v_cos_f32 v{TMP}, v{arg}'); A(f'v_sin_f32 v{TMP+1}, v{arg}')
        A(f'v_cvt_pk_bf16_f32 v{dre}, v{TMP}, v{TMP+1}'); A(f'v_cvt_pk_bf16_f32 v{dim}, -v{TMP+1}, v{TMP}')
    for u in range(4):
        for jj in range(4):
            if jj==0:
                if u==0: A('v_mov_b32 v13, v11')
                else: A('v_add_f32 v11, v11, v12'); A('v_mov_b32 v13, v11')
            else: A('v_add_f32 v13, v13, v10')
            cs_pack(13,C64R+4*u+jj,C64I+4*u+jj)
    A('v_mul_f32 v10, 0x3a000000, v7'); A('v_mul_f32 v11, v10, v9'); A('v_mul_f32 v12, 0x41800000, v10')
    for t in range(2):
        for r in range(4):
            if r==0:
                if t==1: A('v_add_f32 v11, v11, v12')
                A('v_mov_b32 v13, v11')
            else: A('v_add_f32 v13, v13, v10')
            A(f'v_cos_f32 v{T1R+4*t+r}, v13'); A(f'v_sin_f32 v{T1I+4*t+r}, -v13')
    A('s_cmp_eq_u32 s41, 0'); A('s_cbranch_scc0 K2_NOMASK')
    A.wait_vm('d3')
    A('s_cmp_eq_u32 s2, 0'); A('s_cselect_b32 s45, 0, 16')
    for i in range(32): A(f'v_bfe_u32 v{DAT+i}, v{DAT+i}, s45, 16')
    A.label('K2_NOMASK'); A('s_nop 1')
    A.vm=['d0','d0','d1','d1','d2','d2','d3','d3','w','w']
    UR=168; UI=176
    for u in range(4):
        A.wait_vm(f'd{u}')
        for t in range(2):
            A(f'{MF16} {vr(UR+4*t,4)}, {vr(DAT+16*t+4*u,4)}, {vr(C64R+4*u,4)}, '+('0' if u==0 else vr(UR+4*t,4)))
            A(f'{MF16} {vr(UI+4*t,4)}, {vr(DAT+16*t+4*u,4)}, {vr(C64I+4*u,4)}, '+('0' if u==0 else vr(UI+4*t,4)))
        tA,tB=u>>1,u&1
        if tB==0:
            if tA==0: A('v_mul_f32 v10, 0x3d000000, v8')
            else: A('v_add_f32 v10, 0.5, v10')
            A('v_mul_f32 v11, v10, v9'); A('v_mul_f32 v12, 0x41800000, v10'); A('v_mov_b32 v13, v11')
        else: A('v_add_f32 v13, v11, v12')
        for jj in range(4):
            if jj: A('v_add_f32 v13, v13, v10')
            cs_pack(13,C32R+8*tA+4*tB+jj,C32I+8*tA+4*tB+jj)
    PR=184; PI=192; PK=200
    def twid(sr,si,tr,ti,neg=False):
        for t in range(2):
            for p in range(2):
                o=4*t+2*p
                cmul_pk(A,PR+o,PI+o,sr+o,si+o,tr+o,ti+o)
        for i in range(8): A(f'v_cvt_pk_bf16_f32 v{PK+i}, v{PR+i}, '+('-' if neg else '')+f'v{PI+i}')
    twid(UR,UI,T1R,T1I)
    XR=208; XI=216
    for t in range(2):
        for t2 in range(2):
            A(f'{MF16} {vr(XR+4*t2,4)}, {vr(C32R+8*t2+4*t,4)}, {vr(PK+4*t,4)}, '+('0' if t==0 else vr(XR+4*t2,4)))
            A(f'{MF16} {vr(XI+4*t2,4)}, {vr(C32I+8*t2+4*t,4)}, {vr(PK+4*t,4)}, '+('0' if t==0 else vr(XI+4*t2,4)))
    A.wait_vm('w')
    WR=224; WI=232
    for i in range(8):
        A(f'v_lshlrev_b32 v{WR+i}, 16, v{WT+i}'); A(f'v_and_b32 v{WI+i}, 0xffff0000, v{WT+i}')
    twid(XR,XI,WR,WI,neg=True)
    for t2 in range(2):
        for t in range(2):
            A(f'{MF16} {vr(UR+4*t,4)}, {vr(PK+4*t2,4)}, {vr(C32R+8*t+4*t2,4)}, '+('0' if t2==0 else vr(UR+4*t,4)))
            A(f'{MF16} {vr(UI+4*t,4)}, {vr(PK+4*t2,4)}, {vr(C32I+8*t+4*t2,4)}, '+('0' if t2==0 else vr(UI+4*t,4)))
    A('v_lshlrev_b32 v14, 4, v2'); A('v_cvt_f32_u32 v14, v14'); A('v_add_f32 v14, v14, v9')
    for t in range(2):
        if t==0: A('v_mul_f32 v10, 0x3a000000, v8')
        else: A('v_add_f32 v10, 0x3c000000, v10')
        A('v_mul_f32 v13, v10, v14')
        for r in range(4):
            if r: A('v_add_f32 v13, v13, v10')
            A(f'v_cos_f32 v{T2R+4*t+r}, v13'); A(f'v_sin_f32 v{T2I+4*t+r}, -v13')
    twid(UR,UI,T2R,T2I)
    A('v_lshlrev_b32 v15, 4, v0')
    for t in range(2): A(f'ds_write_b128 v15, {vr(PK+4*t,4)} offset:{t*4096}')
    A.wait_lg(); A('s_barrier')
    for u in range(4):
        for t in range(2): A(f'ds_read_b128 {vr(DAT+16*t+4*u,4)}, v6 offset:{t*4096+u*1024}',tag=f'e{u}')
    for u in range(4):
        A.wait_lg(f'e{u}')
        for t in range(2):
            A(f'{MF16} {vr(XR+4*t,4)}, {vr(C64R+4*u,4)}, {vr(DAT+16*t+4*u,4)}, '+('0' if u==0 else vr(XR+4*t,4)))
            A(f'{MF16} {vr(XI+4*t,4)}, {vr(C64I+4*u,4)}, {vr(DAT+16*t+4*u,4)}, '+('0' if u==0 else vr(XI+4*t,4)))
    for i in range(8): A(f'v_cvt_pk_bf16_f32 v{PK+i}, v{XR+i}, v{XI+i}')
    for t in range(2): A(f'buffer_store_dwordx4 {vr(PK+4*t,4)}, v5, s[24:27], s43 offen offset:{t*256}')
    A.label('K2_END'); A('s_endpgm')

def k3(A):
    entry(A,'k3_kernel')
    A('s_cmp_ge_u32 s2, 224'); A('s_cbranch_scc1 K3_END')
    A('s_load_dwordx4 s[4:7], s[0:1], 48'); A('s_load_dwordx2 s[8:9], s[0:1], 72'); A('s_load_dwordx2 s[12:13], s[0:1], 88')
    A('v_lshrrev_b32 v2, 6, v0'); A('v_and_b32 v1, 63, v0'); A('v_readfirstlane_b32 s40, v2')
    A('s_and_b32 s41, s2, 7'); A('s_lshr_b32 s42, s2, 3')
    A('s_mul_i32 s43, s42, 37'); A('s_lshr_b32 s43, s43, 8')
    A('s_mul_i32 s44, s43, 7'); A('s_sub_u32 s44, s42, s44')
    A('s_lshl_b32 s45, s41, 2'); A('s_add_u32 s43, s43, s45')
    A('v_lshrrev_b32 v3, 3, v1'); A('v_and_b32 v4, 7, v1'); A('v_bfe_u32 v5, v1, 4, 1'); A('v_lshlrev_b32 v5, 2, v5'); A('v_xor_b32 v4, v4, v5'); A('v_lshlrev_b32 v4, 4, v4')
    A('v_mul_u32_u24 v6, 896, v3'); A('v_add_u32 v6, v6, v4')
    for i in (1,2,3): A(f'v_add_u32 v{6+i}, {i*(8*896-1024)}, v6')
    A('v_lshlrev_b32 v10, 4, v1')
    A('s_mul_i32 s46, s40, %d'%(448*896)); A('s_lshl_b32 s47, s44, 7'); A('s_add_u32 s46, s46, s47')
    A('s_mul_i32 s48, s40, 40960')
    A('s_lshr_b32 s49, s40, 1'); A('s_and_b32 s50, s40, 1')
    A('s_lshl_b32 s51, s43, 1'); A('s_add_u32 s52, s51, s49'); A('s_xor_b32 s53, s52, 1')
    A('s_mul_i32 s56, s40, %d'%(28*1024))
    for i in range(2): A(f's_mul_i32 s{54+i}, s{52+i}, {112*1024}'); A(f's_add_u32 s{54+i}, s{54+i}, s56')
    A.wait_lg()
    srd(A,16,4,1605632); srd(A,20,12,SZ_H,WS_H)
    def issue(c):
        ops=[]
        for hf in range(2):
            def w(hf=hf):
                A(f's_add_u32 m0, s48, {(c%5)*8192+hf*4096}'); A(f's_add_u32 s57, s46, {(64*c+32*hf)*896}')
                for i in range(4): A(f'buffer_load_dwordx4 v{6+i}, s[16:19], s57 offen offset:{1024*i} lds',tag=f'c{c}')
            ops.append(w)
        for tr in range(2):
            def hh(tr=tr):
                A(f's_add_u32 s58, s{54+tr}, {4096*c}')
                for tt in range(4):
                    d=8*(4*c+tt)+4*tr
                    A(f'buffer_load_dwordx4 a[{d}:{d+3}], v10, s[20:23], s58 offen offset:{1024*tt}',tag=f'c{c}')
            ops.append(hh)
        return ops
    for c in range(3):
        for op in issue(c): op()
    srd(A,24,12,SZ_Z,WS_Z); srd(A,28,12,SZ_G,WS_G); srd(A,32,6,896); srd(A,36,8,1835008)
    A('v_and_b32 v12, 31, v1'); A('v_lshrrev_b32 v14, 5, v1')
    A('v_and_b32 v2, 3, v12'); A('v_lshrrev_b32 v3, 2, v12'); A('v_lshl_add_u32 v11, v2, 5, v3')
    for i in range(2):
        A(f's_lshr_b32 s{60+i}, s{52+i}, 2'); A(f's_lshl_b32 s{60+i}, s{60+i}, 7'); A(f's_and_b32 s62, s{52+i}, 3'); A('s_lshl_b32 s62, s62, 3'); A(f's_add_u32 s{60+i}, s{60+i}, s62')
    A('v_lshlrev_b32 v13, 2, v11')
    for i in range(2):
        A(f's_lshl_b32 s62, s{60+i}, 2'); A(f'buffer_load_dword v{240+2*i}, v13, s[28:31], s62 offen',tag='g')
    A('v_lshlrev_b32 v15, 1, v12')
    for tc in range(2):
        A(f's_xor_b32 s63, s50, {tc}'); A('s_lshl_b32 s63, s63, 6'); A('s_add_u32 s63, s63, s47')
        A(f'buffer_load_ushort v{232+4*tc}, v15, s[32:35], s63 offen',tag='g')
        for j in (1,2,3): A(f'v_mov_b32 v{232+4*tc+j}, 0')
    A('v_cmp_gt_u32 vcc, 32, v0'); A('v_mov_b32 v249, 0'); A('v_mov_b32 v250, 0'); A('v_mov_b32 v251, 0'); A('v_mov_b32 v2, 0x3f80')
    A('v_cndmask_b32 v248, 0, v2, vcc')
    A('v_bfe_u32 v2, v1, 2, 2'); A('v_lshl_add_u32 v3, v14, 2, v2'); A('v_lshlrev_b32 v3, 7, v3')
    A('v_lshrrev_b32 v4, 1, v2'); A('v_xor_b32 v4, s50, v4'); A('v_lshlrev_b32 v4, 6, v4')
    A('v_bfe_u32 v5, v1, 4, 1'); A('v_lshlrev_b32 v5, 5, v5'); A('v_and_b32 v2, 3, v1'); A('v_lshlrev_b32 v2, 3, v2')
    A('v_add3_u32 v252, v3, v4, v5'); A('v_add3_u32 v252, v252, v2, s48'); A('v_xor_b32 v253, 64, v252')
    A('v_lshlrev_b32 v254, 15, v14'); A('v_lshl_add_u32 v254, v12, 2, v254')
    A('s_mul_i32 s64, s40, %d'%(56*8192))
    for i in range(2): A(f's_lshl_b32 s{65+i}, s{52+i}, 7'); A(f's_add_u32 s{65+i}, s{65+i}, s64')
    A('s_mul_i32 s67, s40, 56'); A('v_lshl_add_u32 v2, v14, 2, s67'); A('v_cvt_f32_u32 v2, v2')
    for tc in range(2):
        A(f's_xor_b32 s63, s50, {tc}'); A('s_lshl_b32 s63, s63, 5'); A('s_lshl_b32 s68, s44, 6'); A('s_add_u32 s63, s63, s68')
        A('v_add_u32 v3, s63, v12'); A('v_cvt_f32_u32 v4, v3'); A(f'v_mul_f32 v4, {f32(1/448)}, v4')
        A('v_mul_f32 v5, v4, v2'); A('v_fract_f32 v5, v5')
        A('v_mul_f32 v96, 0x41000000, v4')
        for t in range(2):
            for jj in range(4):
                if jj==0 and t==0: A('v_mov_b32 v97, v5')
                elif jj==0: A('v_add_f32 v97, v5, v96')
                else: A('v_add_f32 v97, v97, v4')
                A(f'v_cos_f32 v{80+8*t+2*jj}, v97'); A(f'v_sin_f32 v{81+8*t+2*jj}, v97')
        A('v_cos_f32 v98, v96'); A('v_add_f32 v98, v98, v98'); A('v_mov_b32 v99, v98')
        for t in range(7):
            cur=80+8*(t&1); oth=80+8*((t+1)&1)
            if t>=2:
                for j in range(0,8,2): A(f'v_pk_fma_f32 {vr(cur+j,2)}, v[98:99], {vr(oth+j,2)}, {vr(cur+j,2)} neg_lo:[0,0,1] neg_hi:[0,0,1]')
            for jj in range(4): A(f'v_cvt_pk_bf16_f32 v{144+8*t+4*tc+jj}, v{cur+2*jj}, v{cur+2*jj+1}')
        A('v_lshlrev_b32 v3, 31, v3'); A('v_or_b32 v3, 0x3f003f00, v3'); A(f'v_cndmask_b32 v{144+4*tc}, v{144+4*tc}, v3, vcc')
    ACB=16; ACA=80
    def zloads():
        ops=[]
        for t in range(7):
            for jj in range(4):
                for tr in range(2):
                    def z(t=t,jj=jj,tr=tr):
                        A(f's_add_u32 s59, s{65+tr}, {(8*t+jj)*8192}')
                        dst=f'a{8*t+4*tr+jj}' if (t,jj)!=(0,0) else f'v{244+tr}'
                        A(f'buffer_load_dword {dst}, v254, s[24:27], s59 offen',tag=f'z{t}')
                    ops.append(z)
            if t==0:
                for tr in range(2):
                    def z2(tr=tr):
                        A(f's_lshl_b32 s59, s{52+tr}, 7'); A(f's_add_u32 s59, s59, {224*8192}')
                        A(f'buffer_load_dword v{246+tr}, v255, s[24:27], s59 offen',tag='z0')
                    ops.append(z2)
        return ops
    A('v_lshlrev_b32 v255, 2, v12')
    Z=zloads(); zsplit={4:Z[:26],5:Z[26:50],6:Z[50:]}
    def rd(t):
        c=t//4; tt=t%4
        for tc in range(2):
            for e in range(2):
                d=200+8*(t%4)+4*tc+2*e
                A(f'ds_read_b64_tr_b16 v[{d}:{d+1}], v{252+tc} offset:{(c%5)*8192+tt*2048+e*1024}',tag=f'r{t}')
    A.wait_vm('c0'); rd(0); rd(1)
    for c in range(7):
        main=[]
        for tt in range(4):
            t=4*c+tt
            for tr in range(2):
                for tc in range(2):
                    def mm(t=t,tr=tr,tc=tc):
                        if tr==0 and tc==0:
                            if t+2<28:
                                if (t+2)%4==0: A.wait_vm(f'c{(t+2)//4}')
                                rd(t+2)
                            A.wait_lg(f'r{t}')
                        ac=vr(ACB+16*(2*tr+tc),16)
                        A(f'{MF32} {ac}, {vr(200+8*(t%4)+4*tc,4)}, a[{8*t+4*tr}:{8*t+4*tr+3}], '+('0' if t==0 else ac))
                        if t==12: A(f'{MF32} {ac}, {vr(232+4*tc,4)}, v[248:251], {ac}')
                    main.append(mm)
        fill=issue(c+3) if c+3<7 else zsplit[c]
        interleave(A,main,fill)
    A.wait_vm('z0')
    A('s_mov_b32 s69, 0x05040100')
    for tr in range(2):
        A(f'v_perm_b32 v{246+tr}, v{246+tr}, v{244+tr}, s69'); A(f'v_cndmask_b32 v{244+tr}, v{244+tr}, v{246+tr}, vcc'); A(f'v_accvgpr_write_b32 a{4*tr}, v{244+tr}')
    for t in range(7):
        A.wait_vm(f'z{t}')
        for tr in range(2):
            for tc in range(2):
                ac=vr(ACA+16*(2*tr+tc),16)
                A(f'{MF32} {ac}, {vr(144+8*t+4*tc,4)}, a[{8*t+4*tr}:{8*t+4*tr+3}], '+('0' if t==0 else ac))
    for tr in range(2):
        A(f'v_sub_f32 v{244+2*tr}, 1.0, v{240+2*tr}'); A(f'v_mov_b32 v{245+2*tr}, v{244+2*tr}')
        A(f'v_mul_f32 v{240+2*tr}, {f32(2.0/(2048*448))}, v{240+2*tr}'); A(f'v_mov_b32 v{241+2*tr}, v{240+2*tr}')
    A('v_add_u32 v2, s48, v10')
    for tau in (1,2,3,0):
        tr=tau>>1
        for j in range(0,16,2):
            b=ACB+16*tau+j; a=ACA+16*tau+j
            A(f'v_pk_mul_f32 {vr(b,2)}, {vr(b,2)}, {vr(244+2*tr,2)}')
        for j in range(0,16,2):
            b=ACB+16*tau+j; a=ACA+16*tau+j
            A(f'v_pk_fma_f32 {vr(b,2)}, {vr(a,2)}, {vr(240+2*tr,2)}, {vr(b,2)}')
        if tau:
            for g in range(4): A(f'ds_write_b128 v2, {vr(ACB+16*tau+4*g,4)} offset:{((tau-1)*4+g)*1024}')
    A.wait_lg(); A('s_barrier')
    for tau in (1,2,3):
        A(f's_xor_b32 s63, s40, {tau}'); A('s_mul_i32 s63, s63, 40960'); A(f'v_add_u32 v{2+tau}, s63, v10')
        for g in range(4): A(f'ds_read_b128 {vr(ACB+16*tau+4*g,4)}, v{2+tau} offset:{((tau-1)*4+g)*1024}',tag=f'x{tau}')
    A('v_mul_u32_u24 v6, 896, v11'); A('v_lshl_add_u32 v6, v14, 4, v6')
    A('s_mul_i32 s63, s60, 896'); A('s_add_u32 s63, s63, s47'); A('s_lshl_b32 s62, s50, 6'); A('s_add_u32 s63, s63, s62')
    for tau in (1,2,3):
        A.wait_lg(f'x{tau}')
        for j in range(0,16,2): A(f'v_pk_add_f32 {vr(ACB+j,2)}, {vr(ACB+j,2)}, {vr(ACB+16*tau+j,2)}')
    for j in range(8): A(f'v_cvt_pk_bf16_f32 v{200+j}, v{ACB+2*j}, v{ACB+2*j+1}')
    for pr in range(2):
        b=200+4*pr
        A(f'v_permlane32_swap_b32 v{b}, v{b+2}'); A(f'v_permlane32_swap_b32 v{b+1}, v{b+3}')
        A(f'buffer_store_dwordx4 {vr(b,4)}, v6, s[36:39], s63 offen offset:{32*pr}')
    A.label('K3_END'); A('s_endpgm')

def build():
    A=Asm()
    hdr=open('cdna_kernels/'+NAME+'.s.ref').read().split('; Override launch')[0]
    A.raw(hdr.rstrip())
    A.raw('; @launch kernel=k1_kernel grid=(256,1,1) block=(256,1,1) lds=163840')
    A.raw('; @launch kernel=k2_kernel grid=(225,1,1) block=(256,1,1) lds=8192')
    A.raw('; @launch kernel=k3_kernel grid=(224,1,1) block=(256,1,1) lds=163840')
    A.raw('.amdgcn_target "amdgcn-amd-amdhsa--gfx950"\n.text')
    k1(A); k2(A); k3(A)
    A.raw('.section .rodata,"a"')
    for n,v in (('k1_kernel',256+112),('k2_kernel',240),('k3_kernel',256+224)):
        A.raw('.p2align 6'); A.raw(kd(n,v,256 if v>256 else 240))
    return A.text()
if __name__=='__main__':
    out=sys.argv[1] if len(sys.argv)>1 else 'cdna_kernels/'+NAME+'.s'
    open(out,'w').write(build())
```
